```python
import torch

def _softmax(x, axis=-1):
    return torch.softmax(x, dim=axis)
def _gelu(x):
    return torch.nn.functional.gelu(x, approximate="tanh")
def _silu(x):
    return torch.nn.functional.silu(x)
def _sigmoid(x):
    return torch.sigmoid(x)
def _layernorm(x, axis=-1, eps=1e-5):
    m = x.mean(dim=axis, keepdim=True)
    v = x.var(dim=axis, keepdim=True, unbiased=False)
    return (x - m) / torch.sqrt(v + eps)
def _scatter_add(tgt, idx, src, axis=0):
    return tgt.clone().index_add_(axis, idx, src)
def _segment_sum(src, seg, n):
    out = torch.zeros((n,) + src.shape[1:], dtype=src.dtype)
    return out.index_add_(0, seg, src)
def _pad(x, pw):
    flat = tuple(v for pair in reversed(pw) for v in pair)
    return torch.nn.functional.pad(x, flat)

kernel_name = 'recurrent_scan__sliding_block_cached__glu_gated_reglu__decode'

def setup_inputs():

    _w = (lambda a: (lambda t: t.to(torch.bfloat16) if t.is_floating_point() else t)(torch.as_tensor(a)))
    def _A_setup():
        B, Sq, D = 1, 1, 640
        Hq, Hkv, Sk, Dh = 32, 32, 8192, 192
        assert Hq % Hkv == 0, (Hq, Hkv)
        return {
            "x": _w((lambda *s: torch.randn(*s, dtype=torch.bfloat16) * 0.05)(B, Sq, D)),
            "k_cache": _w((lambda *s: torch.randn(*s, dtype=torch.bfloat16) * 3.2)(B, Hkv, Sk, Dh)),
            "v_cache": _w((lambda *s: torch.randn(*s, dtype=torch.bfloat16) * 3.2)(B, Hkv, Sk, Dh)),
            "wq": _w((lambda *s: torch.randn(*s, dtype=torch.bfloat16) * 3.2)(D, Hq * Dh) * (D ** -0.5)),
            "wo": _w((lambda *s: torch.randn(*s, dtype=torch.bfloat16) * 3.2)(Hq * Dh, D) * ((Hq * Dh) ** -0.5)),
        }
    _A_in = _A_setup()

    def _B_setup():
        B, S, D, F = 1, 1, 640, 1536
        return {
            "x": _w((lambda *s: torch.randn(*s, dtype=torch.bfloat16) * 0.05)(B, S, D)),
            "W_gate": _w((lambda *s: torch.randn(*s, dtype=torch.bfloat16) * 0.4)(D, F) * (2.0 / D) ** 0.5),
            "W_up": _w((lambda *s: torch.randn(*s, dtype=torch.bfloat16) * 0.4)(D, F) * (2.0 / D) ** 0.5),
            "W_down": _w((lambda *s: torch.randn(*s, dtype=torch.bfloat16) * 0.4)(F, D) * (1.0 / F) ** 0.5),
        }
    _B_in = _B_setup()

    return {
        "A_x": _A_in["x"],
        "A_k_cache": _A_in["k_cache"],
        "A_v_cache": _A_in["v_cache"],
        "A_wq": _A_in["wq"],
        "A_wo": _A_in["wo"],
        "B_x": _B_in["x"],
        "B_W_gate": _B_in["W_gate"],
        "B_W_up": _B_in["W_up"],
        "B_W_down": _B_in["W_down"],
    }

def reference(A_x, A_k_cache, A_v_cache, A_wq, A_wo, B_x, B_W_gate, B_W_up, B_W_down):
    def _A_ref(x, k_cache, v_cache, wq, wo):
        B, Sq, D = x.shape
        Hq, Dh = 32, 192
        Hkv, Sk = k_cache.shape[1], k_cache.shape[2]
        W = min(4096, max(256, Sk // 4))
        rep = Hq // Hkv
        q = (lambda x, *d: x.permute(*d))((x @ wq).reshape(B, Sq, Hq, Dh), 0, 2, 1, 3)
        k = (lambda x, n, axis: torch.repeat_interleave(x, n, dim=axis))(k_cache[:, :, Sk - W:, :], rep, axis=1)
        v = (lambda x, n, axis: torch.repeat_interleave(x, n, dim=axis))(v_cache[:, :, Sk - W:, :], rep, axis=1)
        scores = torch.einsum("bhqd,bhkd->bhqk", q, k) * (Dh ** -0.5)
        p = _softmax(scores, axis=-1)
        o = torch.einsum("bhqk,bhkd->bhqd", p, v)
        return (lambda x, *d: x.permute(*d))(o, 0, 2, 1, 3).reshape(B, Sq, Hq * Dh) @ wo

    def _B_ref(x, W_gate, W_up, W_down):
        gate = torch.einsum("bsd,df->bsf", x, W_gate)
        up = torch.einsum("bsd,df->bsf", x, W_up)
        gate = gate * (lambda x, dt: x.to(dt))(gate > 0, gate.dtype)
        h = gate * up
        return torch.einsum("bsf,fd->bsd", h, W_down)

    x = A_x
    xn = _layernorm(x, axis=-1)
    s = _A_ref(xn, A_k_cache, A_v_cache, A_wq, A_wo)
    g = _silu(_B_ref(xn, B_W_gate, B_W_up, B_W_down))
    return x + s * g
```

```python
import re

TRANS = ("v_exp_f32", "v_log_f32", "v_rcp_f32", "v_rsq_f32", "v_sqrt_f32", "v_sin_f32", "v_cos_f32")

def regs_of(tok):
    tok = tok.strip()
    neg = tok.lstrip("-|").rstrip("|")
    m = re.fullmatch(r"([vsa])(\d+)", neg)
    if m: return [(m.group(1), int(m.group(2)))]
    m = re.fullmatch(r"([vsa])\[(\d+):(\d+)\]", neg)
    if m: return [(m.group(1), i) for i in range(int(m.group(2)), int(m.group(3)) + 1)]
    if neg == "vcc": return [("s", 106), ("s", 107)]
    if neg == "vcc_lo": return [("s", 106)]
    if neg == "vcc_hi": return [("s", 107)]
    if neg == "exec": return [("s", 126), ("s", 127)]
    if neg == "exec_lo": return [("s", 126)]
    if neg == "exec_hi": return [("s", 127)]
    return []

class Ins:
    def __init__(self, text):
        self.text = text
        t = text.split(";")[0].strip()
        self.label = t.endswith(":")
        self.mn = t.split()[0] if t else ""
        rest = t[len(self.mn):].strip()
        ops = [o.strip() for o in re.split(r",(?![^\[]*\])", rest)] if rest else []
        clean = []
        for o in ops:
            clean.append(o.split()[0] if o else o)
        self.ops = clean
        self.rest = rest
        mn = self.mn
        self.is_mfma = mn.startswith("v_mfma")
        self.is_valu = mn.startswith("v_") and not self.is_mfma
        self.is_ds = mn.startswith("ds_")
        self.is_vmem = mn.startswith("buffer_") or mn.startswith("global_")
        self.is_salu = mn.startswith("s_")
        self.is_dpp = "_dpp" in mn or "quad_perm" in rest or "row_" in rest
        self.is_perm = mn.startswith("v_permlane")
        self.is_trans = any(mn.startswith(x) for x in TRANS)
        self.is_dot = mn.startswith("v_dot2")
        self.is_rl = mn.startswith("v_readlane") or mn.startswith("v_readfirstlane")
        w, r = [], []
        R = lambda k: regs_of(self.ops[k]) if k < len(self.ops) else []
        n = len(self.ops)
        if self.is_mfma:
            w = R(0); self.A = R(1); self.B = R(2); self.C = R(3); r = self.A + self.B + self.C
        elif self.is_valu:
            if self.is_perm:
                w = R(0) + R(1); r = R(0) + R(1)
            else:
                w = R(0)
                k0 = 1
                if mn.startswith(("v_add_co", "v_sub_co", "v_addc_co", "v_div_scale")):
                    w += R(1); k0 = 2
                for k in range(k0, n): r += R(k)
                if mn.startswith(("v_fmac", "v_dot2c", "v_mac")) or self.is_dpp: r += R(0)
                if mn.startswith("v_cndmask") and n == 3: r += regs_of("vcc")
                if mn.startswith("v_cndmask_b32_e32"): r += regs_of("vcc")
                if mn.startswith("v_cmp") and not R(0): pass
        elif self.is_ds:
            if mn.startswith("ds_read") or mn.startswith("ds_bpermute") or mn.startswith("ds_swizzle"):
                w = R(0)
                for k in range(1, n): r += R(k)
            else:
                for k in range(n): r += R(k)
        elif self.is_vmem:
            if "load" in mn:
                w = R(0)
                for k in range(1, n): r += R(k)
            elif mn in ("buffer_inv", "buffer_wbl2"):
                pass
            else:
                for k in range(n): r += R(k)
        elif self.is_salu:
            if mn.startswith(("s_cmp", "s_bitcmp", "s_cbranch", "s_branch", "s_waitcnt", "s_nop", "s_barrier", "s_endpgm", "s_sleep", "s_setprio")):
                for k in range(n): r += R(k)
                if mn.startswith("s_cbranch_vcc"): r += regs_of("vcc")
            else:
                w = R(0)
                for k in range(1, n): r += R(k)
        self.w = set(w); self.r = set(r)
        self.store_wide = self.is_vmem and "store" in mn and ("x4" in mn or "x3" in mn)
        self.store_data = set(R(0)) if self.store_wide else set()
        self.states = 1
        if mn == "s_nop": self.states = int(self.ops[0]) + 1

def need(p, c):
    n = 0
    vw = {x for x in p.w if x[0] == "v"}
    sw = {x for x in p.w if x[0] == "s"}
    if p.is_valu:
        if vw & c.r:
            if c.is_dpp or c.is_perm or c.is_mfma: n = max(n, 2)
            if c.is_rl: n = max(n, 1)
            if p.is_trans and c.is_valu and not c.is_trans: n = max(n, 1)
            if p.is_trans and (c.is_mfma): n = max(n, 2)
        if p.is_dot and (vw & (c.r | c.w)):
            if c.is_dot and c.mn == p.mn:
                ab = set(regs_of(c.ops[1])) | set(regs_of(c.ops[2]))
                if vw & ab: n = max(n, 3)
            else:
                n = max(n, 3)
        if sw & c.r:
            if c.is_vmem: n = max(n, 5)
            elif c.is_valu: n = max(n, 4 if c.mn.startswith(("v_readlane", "v_writelane")) else 2)
            elif c.is_salu: n = max(n, 1)
            elif c.is_ds: n = max(n, 2)
    if p.is_mfma:
        d = p.w
        if c.is_mfma:
            if d & (set(c.A) | set(c.B)): n = max(n, 8)
            if d & set(c.C):
                n = max(n, 0 if set(c.C) == d else 6)
            if (d & c.w) and set(c.C) != d: n = max(n, 6)
        elif d & (c.r | c.w):
            n = max(n, 8)
        if c.is_valu and (set(p.C) & c.w): n = max(n, 3)
    if p.store_wide and (p.store_data & c.w):
        n = max(n, 2 if c.is_valu else 1)
    return n

def fix_hazards(lines):
    out = []
    hist = []
    inserted = 0
    for text in lines:
        t = text.split(";")[0].strip()
        if not t or t.startswith("."):
            out.append(text); continue
        ins = Ins(text)
        if ins.label:
            out.append(text); continue
        req = 0; dist = 0
        for p in reversed(hist):
            nn = need(p, ins)
            if nn > dist: req = max(req, nn - dist)
            dist += p.states
            if dist >= 10: break
        if req > 0:
            nop = Ins(f"s_nop {req-1}")
            out.append(f"s_nop {req-1}"); hist.append(nop); inserted += 1
        out.append(text); hist.append(ins)
        hist = hist[-12:]
    return out, inserted

class Asm:
    def __init__(self):
        self.lines = []
        self.vm = []
    def I(self, s):
        for l in s.strip().split("\n"):
            l = l.strip()
            if l: self.lines.append(l)
    def label(self, name): self.lines.append(name + ":")
    def vmem(self, name, text):
        self.I(text); self.vm.append(name)
        assert len(self.vm) <= 63
    def wait(self, name):
        if name not in self.vm: return
        i = self.vm.index(name); n = len(self.vm) - i - 1
        self.I(f"s_waitcnt vmcnt({n})"); self.vm = self.vm[i + 1:]
    def window(self, w):
        if len(self.vm) >= w:
            self.wait(self.vm[len(self.vm) - w])
    def drain(self):
        self.I("s_waitcnt vmcnt(0)"); self.vm = []
```

```python
import struct, sys
from asmlib import Asm, fix_hazards

NAME = "recurrent_scan__sliding_block_cached__glu_gated_reglu__decode"
def f32(x): return "0x%08x" % struct.unpack("<I", struct.pack("<f", x))[0]

A_OFF = 4096
B_OFF = A_OFF + 256 * 2560
CS_OFF = B_OFF + 256 * 1024
CB_OFF = CS_OFF + 256 * 1280
STAMP_OFF = 2 << 20
WS_REC = 4 << 20
L_CNTQ, L_CNTM, L_MX, L_QL, L_XR, L_PART = 0, 4, 32, 64, 768, 2048
PS = 420
LDS_BYTES = L_PART + 16 * PS * 4
OOB = "0x80000000"
SPIN = 1 << 16

vL, vOct, vE16, vT = 0, 1, 2, 3
vM = 4
vKV, vW1, vWo, vMask, vMid, vQrd = 8, 9, 10, 11, 12, 13
vApub, vApoll, vCpub, vBpub, vBpoll = 14, 15, 16, 17, 18
vPw = 19
vPr, vML, vTag, vQwr = 22, 23, 24, 25
vCnt = 26
vt = [27, 28, 29, 30, 31]
vK, vV, vW, vWd, vWoD = 32, 80, 128, 168, 176
vQ, vD, vA, vX = 200, 212, 224, 240
sK, sV, sW1, sWo, sWd, sWS, sX, sOut = 28, 32, 36, 40, 44, 48, 52, 56
sH, sC, sIdx, sRq, sHf = 60, 61, 62, 63, 64
sKV = 65
sW1o, sW1s, sWoO, sWdO = 69, 70, 71, 72
sT, sTA, sTB = 73, 74, 75
st = [76, 77, 78, 79]
sApub, sApoll, sBpub, sBpoll, sCs, sCb, sSpin, sQ = 80, 81, 82, 83, 84, 85, 86, 87
sRs, sRb = 88, 89
STAMPS = [4, 6, 8, 10, 12, 14, 16, 18, 20, 22, 90, 92, 94, 96, 98]

class Gen:
    def __init__(self, wA=6, wB=4, stamps=False, nt="nt", posA=None, dump=False):
        self.wA, self.wB, self.stamps, self.nt = wA, wB, stamps, nt
        self.dump = dump
        self.uid = 0
    def lbl(self, base):
        self.uid += 1; return f"L_{base}_{self.uid}"
    def stamp(self, a, i):
        if self.stamps:
            s = STAMPS[i]; a.I(f"s_memrealtime s[{s}:{s+1}]")

    def rb(self, a, dst, src):
        a.I(f"v_cvt_pk_bf16_f32 v{dst}, v{src}, v{src}")
        a.I(f"v_and_b32 v{dst}, 0xffff0000, v{dst}")
    def dpp(self, a, op, d, s0, s1, ctl):
        a.I(f"{op}_dpp v{d}, v{s0}, v{s1} {ctl} row_mask:0xf bank_mask:0xf")
    def oct_reduce(self, a, op, regs):
        for ctl in ("quad_perm:[1,0,3,2]", "quad_perm:[2,3,0,1]", "row_half_mirror"):
            for r in regs: self.dpp(a, op, r, r, r, ctl)
    def rows_reduce(self, a, op, r, tmp):
        for sw in ("v_permlane16_swap_b32", "v_permlane32_swap_b32"):
            a.I(f"v_mov_b32 v{tmp}, v{r}")
            a.I(f"{sw} v{tmp}, v{r}")
            a.I(f"{op} v{r}, v{r}, v{tmp}")
    def wave_reduce(self, a, op, r, tmp):
        for k in (8, 4, 2, 1): self.dpp(a, op, r, r, r, f"row_ror:{k}")
        self.rows_reduce(a, op, r, tmp)
    def aop(self, a, dst, pp):
        for i in range(4): a.I(f"v_and_b32 v{dst+i}, v{pp}, v{vM+i}")
    def mfma(self, a, d, A, B, first):
        c = "0" if first else f"v[{d}:{d+3}]"
        a.I(f"v_mfma_f32_16x16x32_bf16 v[{d}:{d+3}], v[{A}:{A+3}], v[{B}:{B+3}], {c}")
    def fold(self, a, d, o0, o1):
        a.I(f"v_permlane32_swap_b32 v{d}, v{d+2}")
        a.I(f"v_permlane32_swap_b32 v{d+1}, v{d+3}")
        self.dpp(a, "v_add_f32", o0, d + 2, d, "row_ror:8")
        self.dpp(a, "v_add_f32", o1, d + 3, d + 1, "row_ror:8")
    def lds_wait(self, a, addr_off, target):
        l = self.lbl("lw"); e = self.lbl("le")
        a.I(f"s_mov_b32 s{sSpin}, 0")
        a.label(l)
        a.I(f"ds_read_b32 v{vt[0]}, v{vCnt} offset:{addr_off}")
        a.I(f"s_add_u32 s{sSpin}, s{sSpin}, 1")
        a.I("s_waitcnt lgkmcnt(0)")
        a.I(f"v_readfirstlane_b32 s{st[0]}, v{vt[0]}")
        a.I(f"s_cmp_gt_u32 s{sSpin}, {SPIN*16}")
        a.I(f"s_cbranch_scc1 {e}")
        a.I(f"s_cmp_lt_u32 s{st[0]}, {target}")
        a.I(f"s_cbranch_scc1 {l}")
        a.label(e)
    def lds_inc(self, a, addr_off):
        a.I(f"v_mov_b32 v{vt[0]}, 1")
        a.I("s_mov_b64 exec, 1")
        a.I(f"ds_add_u32 v{vCnt}, v{vt[0]} offset:{addr_off}")
        a.I("s_mov_b64 exec, -1")
    def kv_load(self, a, which, i):
        R, jj = divmod(i, 3)
        srd, base = (sK, vK) if which == "K" else (sV, vV)
        d = base + 4 * i
        a.vmem(f"{which}{i}", f"buffer_load_dwordx4 v[{d}:{d+3}], v{vKV}, s[{srd}:{srd+3}], s{sKV+R} offen offset:{jj*128} {self.nt}")
    def bad_tags10(self, a, regs_a, regs_b, t0, t1):
        first = True
        acc = t0
        for (x, y), s in [(p, sTA) for p in regs_a] + [(p, sTB) for p in regs_b]:
            dst = acc if first else t1
            a.I(f"v_bitop3_b32 v{dst}, v{x}, v{y}, s{s} bitop3:0x7e")
            if not first: a.I(f"v_or_b32 v{acc}, v{acc}, v{t1}")
            first = False
        a.I(f"v_and_b32 v{acc}, v{acc}, v{vMask}")
        a.I(f"v_cmp_ne_u32 vcc, 0, v{acc}")
    def poll_retry(self, a, issue, check, names):
        a.wait(names[-1])
        ok = self.lbl("ok"); lp = self.lbl("rt")
        check()
        a.I(f"s_cbranch_vccz {ok}")
        a.I(f"s_mov_b32 s{sSpin}, 0")
        a.label(lp)
        saved = list(a.vm)
        issue()
        a.I("s_waitcnt vmcnt(0)")
        a.vm = saved
        check()
        a.I(f"s_add_u32 s{sSpin}, s{sSpin}, 1")
        a.I(f"s_cmp_gt_u32 s{sSpin}, {SPIN}")
        a.I(f"s_cbranch_scc1 {ok}")
        a.I(f"s_cbranch_vccnz {lp}")
        a.label(ok)

    def prologue(self, a):
        I = a.I
        if self.stamps: I("s_memrealtime s[100:101]")
        I("s_cmp_ge_u32 s2, 256"); I("s_cbranch_scc1 L_end")
        I("s_load_dwordx16 s[4:19], s[0:1], 0")
        I("s_load_dwordx8 s[20:27], s[0:1], 64")
        I(f"v_lshrrev_b32 v{vT}, 6, v0"); I(f"v_and_b32 v{vL}, 63, v0")
        I(f"v_readfirstlane_b32 s3, v{vT}")
        I(f"v_lshrrev_b32 v{vOct}, 3, v{vL}")
        I(f"v_and_b32 v{vt[0]}, 7, v{vL}"); I(f"v_lshlrev_b32 v{vE16}, 4, v{vt[0]}")
        I(f"v_mov_b32 v{vCnt}, 0"); I(f"v_mov_b32 v{vt[1]}, 0"); I(f"v_mov_b32 v{vt[2]}, 0")
        I(f"v_mov_b32 v{vt[3]}, 0")
        I(f"ds_write_b64 v{vCnt}, v[{vt[1]}:{vt[2]}]" if vt[1] % 2 == 0 else f"ds_write_b64 v{vCnt}, v[{vt[1]}:{vt[2]}]")
        I(f"s_and_b32 s{sH}, s2, 31"); I(f"s_lshr_b32 s{sC}, s2, 5")
        I(f"s_lshl_b32 s{sIdx}, s{sH}, 3"); I(f"s_add_u32 s{sIdx}, s{sIdx}, s{sC}")
        I(f"s_lshr_b32 s{sRq}, s{sC}, 1"); I(f"s_and_b32 s{sHf}, s{sC}, 1")
        I(f"s_mul_i32 s{sKV}, s{sH}, 3145728")
        I(f"s_lshl_b32 s{st[0]}, s{sC}, 8"); I(f"s_lshl_b32 s{st[1]}, s3, 5"); I(f"s_add_u32 s{st[0]}, s{st[0]}, s{st[1]}")
        I(f"s_add_u32 s{st[0]}, s{st[0]}, 6144"); I(f"s_mul_i32 s{st[0]}, s{st[0]}, 384"); I(f"s_add_u32 s{sKV}, s{sKV}, s{st[0]}")
        for R in range(1, 4): I(f"s_add_u32 s{sKV+R}, s{sKV}, {3072*R}")
        I(f"v_mul_u32_u24 v{vKV}, 384, v{vOct}"); I(f"v_add_u32 v{vKV}, v{vKV}, v{vE16}")
        I(f"s_cmp_lt_u32 s3, 3")
        I(f"s_movk_i32 s{st[1]}, 0xc00"); I(f"s_cselect_b32 s{st[0]}, 0x3000, s{st[1]}")
        I(f"v_mul_u32_u24 v{vW1}, s{st[0]}, v{vOct}"); I(f"v_add_u32 v{vW1}, v{vW1}, v{vE16}")
        I(f"s_lshl_b32 s{sW1s}, s{st[0]}, 3")
        I(f"s_mul_i32 s{st[1]}, s{sC}, 80"); I(f"s_mul_i32 s{st[1]}, s{st[1]}, s{st[0]}")
        I(f"s_mul_i32 s{st[2]}, s{sH}, 384"); I(f"s_lshl_b32 s{st[3]}, s3, 7"); I(f"s_add_u32 s{st[2]}, s{st[2]}, s{st[3]}")
        I(f"s_lshl_b32 s{st[3]}, s{sH}, 7")
        I(f"s_cmp_lt_u32 s{sH}, 24"); I(f"s_cselect_b32 s{st[3]}, s{st[3]}, 0x7f000000")
        I(f"s_cmp_lt_u32 s3, 3"); I(f"s_cselect_b32 s{st[2]}, s{st[2]}, s{st[3]}")
        I(f"s_add_u32 s{sW1o}, s{st[1]}, s{st[2]}")
        I(f"v_mul_u32_u24 v{vWo}, 0x500, v{vOct}"); I(f"v_add_u32 v{vWo}, v{vWo}, v{vE16}")
        I(f"s_mul_i32 s{st[0]}, s{sHf}, 640"); I(f"s_lshl_b32 s{st[1]}, s3, 7"); I(f"s_add_u32 s{st[0]}, s{st[0]}, s{st[1]}")
        I(f"s_mul_i32 s{st[1]}, s{sH}, 192"); I(f"s_mul_i32 s{st[2]}, s{sRq}, 48"); I(f"s_add_u32 s{st[1]}, s{st[1]}, s{st[2]}")
        I(f"s_mul_i32 s{st[1]}, s{st[1]}, 1280"); I(f"s_add_u32 s{sWoO}, s{st[1]}, s{st[0]}")
        I(f"s_lshl_b32 s{st[1]}, s{sH}, 6"); I(f"s_lshl_b32 s{st[2]}, s{sRq}, 4"); I(f"s_add_u32 s{st[1]}, s{st[1]}, s{st[2]}")
        I(f"s_mul_i32 s{st[1]}, s{st[1]}, 1280"); I(f"s_add_u32 s{sWdO}, s{st[1]}, s{st[0]}")
        I(f"v_and_b32 v{vt[0]}, 1, v{vL}"); I(f"v_cmp_eq_u32 vcc, 1, v{vt[0]}")
        I(f"v_mov_b32 v{vt[1]}, 0xffff"); I(f"v_mov_b32 v{vt[2]}, 0xffff0000")
        I(f"v_cndmask_b32 v{vt[3]}, v{vt[1]}, v{vt[2]}, vcc")
        I(f"v_bfe_u32 v{vt[0]}, v{vL}, 1, 2")
        for i in range(4):
            I(f"v_cmp_eq_u32 vcc, {i}, v{vt[0]}"); I(f"v_cndmask_b32 v{vM+i}, 0, v{vt[3]}, vcc")
        I(f"v_mov_b32 v{vMask}, 0x3ff"); I(f"v_mov_b32 v{vMid}, 0x200")
        I(f"v_add_u32 v{vQrd}, {L_QL}, v{vE16}")
        I(f"s_mul_i32 s{st[0]}, s{sIdx}, 2560"); I(f"s_lshl_b32 s{st[1]}, s3, 9"); I(f"s_add_u32 s{st[0]}, s{st[0]}, s{st[1]}"); I(f"s_add_u32 s{sApub}, s{st[0]}, {A_OFF}")
        I(f"s_mul_i32 s{st[0]}, s{sH}, {8*2560}"); I(f"s_add_u32 s{st[0]}, s{st[0]}, s{st[1]}"); I(f"s_add_u32 s{sApoll}, s{st[0]}, {A_OFF}")
        I(f"s_lshl_b32 s{st[0]}, s{sIdx}, 10"); I(f"s_lshl_b32 s{st[1]}, s3, 7"); I(f"s_add_u32 s{st[0]}, s{st[0]}, s{st[1]}"); I(f"s_add_u32 s{sBpub}, s{st[0]}, {B_OFF}")
        I(f"s_lshl_b32 s{st[0]}, s{sH}, 13"); I(f"s_lshl_b32 s{st[1]}, s{sRq}, 8"); I(f"s_add_u32 s{st[0]}, s{st[0]}, s{st[1]}"); I(f"s_add_u32 s{sBpoll}, s{st[0]}, {B_OFF}")
        I(f"s_mul_i32 s{st[0]}, s{sIdx}, 1280"); I(f"s_lshl_b32 s{st[1]}, s3, 8"); I(f"s_add_u32 s{st[0]}, s{st[0]}, s{st[1]}")
        I(f"s_add_u32 s{sCs}, s{st[0]}, {CS_OFF}"); I(f"s_add_u32 s{sCb}, s{st[0]}, {CB_OFF}")
        n_, g1, g2, q_ = vt[0], vt[1], vt[2], vt[3]
        I(f"v_and_b32 v{n_}, 7, v{vL}"); I(f"v_bfe_u32 v{g1}, v{vL}, 4, 1"); I(f"v_lshrrev_b32 v{g2}, 5, v{vL}")
        I(f"v_lshl_add_u32 v{q_}, v{n_}, 1, v{g1}")
        I(f"v_lshlrev_b32 v{vApub}, 5, v{q_}"); I(f"v_lshl_add_u32 v{vApub}, v{g2}, 4, v{vApub}")
        I(f"v_lshlrev_b32 v{vCpub}, 4, v{q_}"); I(f"v_lshl_add_u32 v{vCpub}, v{g2}, 3, v{vCpub}")
        I(f"v_and_b32 v{vt[4]}, 8, v{vL}"); I(f"v_cmp_eq_u32 vcc, 0, v{vt[4]}"); I(f"v_mov_b32 v{vT}, {OOB}")
        I(f"v_cndmask_b32 v{vApub}, v{vT}, v{vApub}, vcc"); I(f"v_cndmask_b32 v{vCpub}, v{vT}, v{vCpub}, vcc")
        I(f"v_and_b32 v{vt[4]}, 31, v{vL}")
        I(f"v_mul_u32_u24 v{vApoll}, 2560, v{g2}"); I(f"v_lshl_add_u32 v{vApoll}, v{vt[4]}, 4, v{vApoll}")
        I(f"v_lshl_add_u32 v{vQwr}, v{vt[4]}, 1, v{g2}"); I(f"s_lshl_b32 s{st[0]}, s3, 6"); I(f"v_add_u32 v{vQwr}, s{st[0]}, v{vQwr}")
        I(f"v_lshlrev_b32 v{vQwr}, 1, v{vQwr}"); I(f"v_add_u32 v{vQwr}, {L_QL}, v{vQwr}")
        I(f"v_lshlrev_b32 v{vBpub}, 4, v{vOct}"); I(f"v_cmp_eq_u32 vcc, 0, v{n_}"); I(f"v_cndmask_b32 v{vBpub}, v{vT}, v{vBpub}, vcc")
        I(f"v_lshlrev_b32 v{vBpoll}, 10, v{n_}"); I(f"v_lshl_add_u32 v{vBpoll}, v{vOct}, 5, v{vBpoll}")
        base = vt[4]
        I(f"s_lshl_b32 s{st[0]}, s3, 1"); I(f"v_add_u32 v{base}, s{st[0]}, v{g2}"); I(f"v_mul_u32_u24 v{base}, {PS}, v{base}")
        I(f"v_mul_u32_u24 v{vT}, 48, v{g1}"); I(f"v_add_u32 v{base}, v{base}, v{vT}")
        for jj in range(3):
            d = vPw + jj
            I(f"v_add_u32 v{d}, {8*jj}, v{n_}")
            I(f"v_mul_u32_u24 v{vT}, 43, v{d}"); I(f"v_lshrrev_b32 v{vT}, 8, v{vT}")
            I(f"v_mul_u32_u24 v{vT}, 98, v{vT}")
            I(f"v_add3_u32 v{d}, v{d}, v{vT}, v{base}")
            I(f"v_lshlrev_b32 v{d}, 2, v{d}"); I(f"v_add_u32 v{d}, {L_PART}, v{d}")
        I(f"v_mul_u32_u24 v{vPr}, {2*PS}, v{n_}")
        I(f"s_lshr_b32 s{st[0]}, s3, 1"); I(f"s_mul_i32 s{st[0]}, s{st[0]}, 104"); I(f"s_and_b32 s{st[1]}, s3, 1"); I(f"s_mul_i32 s{st[1]}, s{st[1]}, 48")
        I(f"s_add_u32 s{st[0]}, s{st[0]}, s{st[1]}")
        I(f"v_lshrrev_b32 v{vT}, 4, v{vL}"); I(f"v_mul_u32_u24 v{vT}, 12, v{vT}"); I(f"v_add3_u32 v{vPr}, v{vPr}, v{vT}, s{st[0]}")
        I(f"v_bfe_u32 v{vT}, v{vL}, 3, 1"); I(f"v_lshl_add_u32 v{vPr}, v{vT}, 2, v{vPr}")
        I(f"v_lshlrev_b32 v{vPr}, 2, v{vPr}"); I(f"v_add_u32 v{vPr}, {L_PART}, v{vPr}")
        I(f"s_lshl_b32 s{st[0]}, s3, 1"); I(f"v_add_u32 v{vML}, s{st[0]}, v{g2}"); I(f"v_mul_u32_u24 v{vML}, {PS}, v{vML}")
        I(f"v_bfe_u32 v{vT}, v{vL}, 3, 2"); I(f"v_mul_u32_u24 v{vT}, 104, v{vT}"); I(f"v_add_u32 v{vML}, v{vML}, v{vT}")
        I(f"v_mul_u32_u24 v{vT}, 12, v{n_}"); I(f"v_add3_u32 v{vML}, v{vML}, v{vT}, 6")
        I(f"v_lshlrev_b32 v{vML}, 2, v{vML}"); I(f"v_add_u32 v{vML}, {L_PART}, v{vML}")
        I("s_waitcnt lgkmcnt(0)")
        self.stamp_after_karg = True
        def srd(d, b, n):
            I(f"s_mov_b32 s{d}, s{b}"); I(f"s_and_b32 s{d+1}, s{b+1}, 0xffff"); I(f"s_mov_b32 s{d+2}, {n}"); I(f"s_mov_b32 s{d+3}, 0x20000")
        I(f"s_load_dword s{sT}, s[26:27], 0")
        srd(sX, 4, 1280); srd(sK, 6, 100663296); srd(sV, 8, 100663296)
        I("s_cmp_eq_u32 s3, 3"); I(f"s_cselect_b32 s{st[0]}, s16, s10"); I(f"s_cselect_b32 s{st[1]}, s17, s11")
        I("s_cmp_eq_u32 s3, 4"); I(f"s_cselect_b32 s{sW1}, s18, s{st[0]}"); I(f"s_cselect_b32 s{sW1+1}, s19, s{st[1]}")
        I(f"s_and_b32 s{sW1+1}, s{sW1+1}, 0xffff")
        I(f"s_mov_b32 s{st[0]}, 1966080"); I("s_cmp_lt_u32 s3, 3"); I(f"s_cselect_b32 s{sW1+2}, 7864320, s{st[0]}"); I(f"s_mov_b32 s{sW1+3}, 0x20000")
        srd(sWo, 12, 7864320); srd(sWd, 20, 1966080); srd(sOut, 22, 1280); srd(sWS, 26, WS_REC)

    def tags(self, a):
        I = a.I
        I(f"s_add_u32 s{sT}, s{sT}, 1")
        I(f"s_and_b32 s{sTA}, s{sT}, 0x3ff")
        I(f"s_lshr_b32 s{st[0]}, s{sT}, 10"); I(f"s_add_u32 s{st[0]}, s{st[0]}, s{sT}"); I(f"s_and_b32 s{sTB}, s{st[0]}, 0x3ff")
        I(f"v_mov_b32 v{vT}, s{sTA}"); I(f"v_mov_b32 v{vTag}, s{sTB}")
        I(f"v_cmp_gt_u32 vcc, 32, v{vL}"); I(f"v_cndmask_b32 v{vTag}, v{vTag}, v{vT}, vcc")

    def qk(self, a):
        I = a.I
        for jj in range(3): I(f"ds_read_b128 v[{vQ+4*jj}:{vQ+4*jj+3}], v{vQrd} offset:{128*jj}")
        I("s_waitcnt lgkmcnt(0)")
        S = vX
        for jj in range(3):
            for i in range(4):
                for R in range(4):
                    k = vK + 4 * (3 * R + jj) + i
                    c = "0" if (jj == 0 and i == 0) else f"v{S+R}"
                    I(f"v_dot2_f32_bf16 v{S+R}, v{k}, v{vQ+4*jj+i}, {c}")
        self.oct_reduce(a, "v_add_f32", [S + R for R in range(4)])
        for R in range(4): I(f"v_cvt_pk_bf16_f32 v{S+R}, v{S+R}, v{S+R}")
        for R in range(4): I(f"v_and_b32 v{S+R}, 0xffff0000, v{S+R}")
        for R in range(4): I(f"v_mul_f32 v{S+R}, {f32(192 ** -0.5)}, v{S+R}")
        for R in range(4): I(f"v_cvt_pk_bf16_f32 v{S+R}, v{S+R}, v{S+R}")
        for R in range(4): I(f"v_and_b32 v{S+R}, 0xffff0000, v{S+R}")
        m = vX + 4
        I(f"v_max3_f32 v{m}, v{S}, v{S+1}, v{S+2}"); I(f"v_max_f32 v{m}, v{m}, v{S+3}")
        self.dpp(a, "v_max_f32", m, m, m, "row_ror:8")
        self.rows_reduce(a, "v_max_f32", m, vX + 5)
        I(f"s_lshl_b32 s{st[0]}, s3, 2"); I(f"s_add_u32 s{st[0]}, s{st[0]}, {L_MX}"); I(f"v_mov_b32 v{vX+5}, s{st[0]}")
        I(f"ds_write_b32 v{vX+5}, v{m}")
        self.lds_inc(a, L_CNTM)
    def softmax(self, a):
        I = a.I
        S = vX
        self.lds_wait(a, L_CNTM, 8)
        I(f"ds_read_b128 v[{vX+8}:{vX+11}], v{vCnt} offset:{L_MX}")
        I(f"ds_read_b128 v[{vX+12}:{vX+15}], v{vCnt} offset:{L_MX+16}")
        I("s_waitcnt lgkmcnt(0)")
        M = vX + 4
        I(f"v_max3_f32 v{M}, v{vX+8}, v{vX+9}, v{vX+10}"); I(f"v_max3_f32 v{vX+5}, v{vX+11}, v{vX+12}, v{vX+13}")
        I(f"v_max3_f32 v{M}, v{M}, v{vX+14}, v{vX+15}"); I(f"v_max_f32 v{M}, v{M}, v{vX+5}")
        for R in range(4): I(f"v_sub_f32 v{S+R}, v{S+R}, v{M}")
        for R in range(4): I(f"v_mul_f32 v{S+R}, {f32(1.4426950408889634)}, v{S+R}")
        for R in range(4): I(f"v_exp_f32 v{S+R}, v{S+R}")
        l = vX + 6
        I(f"v_add_f32 v{l}, v{S}, v{S+1}"); I(f"v_add_f32 v{vX+7}, v{S+2}, v{S+3}"); I(f"v_add_f32 v{l}, v{l}, v{vX+7}")
        for R in range(4): I(f"v_cvt_pk_bf16_f32 v{S+R}, v{S+R}, v{S+R}")
        self.dpp(a, "v_add_f32", l, l, l, "row_ror:8")
        for R in range(4): self.aop(a, vA + 4 * R, S + R)
        self.rows_reduce(a, "v_add_f32", l, vX + 7)
        I(f"v_cmp_gt_u32 vcc, 32, v{vL}")
        I(f"v_cndmask_b32 v{vX+9}, 0, v{l}, vcc")
        I(f"v_cndmask_b32 v{vX+8}, 0, v{M}, vcc")
        I(f"s_cmp_eq_u32 s3, 0"); I(f"s_cselect_b32 s{st[0]}, -1, 0"); I(f"v_and_b32 v{vX+8}, s{st[0]}, v{vX+8}")
        I(f"ds_write_b64 v{vML}, v[{vX+8}:{vX+9}]")
    def pv(self, a, i):
        R, jj = divmod(i, 3)
        a.wait(f"V{i}")
        self.mfma(a, vD + 4 * jj, vA + 4 * R, vV + 4 * i, R == 0)
    def pv_finish(self, a, stamp_bar=None):
        I = a.I
        I("s_mov_b32 exec_lo, 0x00ff00ff"); I("s_mov_b32 exec_hi, 0xff00ff00")
        for jj in range(3):
            for i in range(4):
                I(f"ds_write_b32 v{vPw+jj}, v{vD+4*jj+i} offset:{48*i}")
        I("s_mov_b64 exec, -1")
        I("s_waitcnt lgkmcnt(0)")
        I("s_barrier")
        if stamp_bar is not None: self.stamp(a, stamp_bar)
        r = vX
        I(f"ds_read_b128 v[{r}:{r+3}], v{vPr}")
        I(f"ds_read_b128 v[{r+4}:{r+7}], v{vPr} offset:{PS*4}")
        I("s_waitcnt lgkmcnt(0)")
        for i in range(4): I(f"v_add_f32 v{r+i}, v{r+i}, v{r+4+i}")
        self.oct_reduce(a, "v_add_f32", [r + i for i in range(4)])
        for i in range(4): I(f"v_bfi_b32 v{r+i}, v{vMask}, s{sTA if i < 2 else sTB}, v{r+i}")
        a.vmem("pubB", f"buffer_store_dwordx4 v[{r}:{r+3}], v{vBpub}, s[{sWS}:{sWS+3}], s{sBpub} offen sc1")

    def role_a(self, a):
        I = a.I; w = self.wA
        X = vX
        I(f"v_lshlrev_b32 v{vt[0]}, 2, v{vL}")
        for k in range(5):
            a.vmem(f"x{k}", f"buffer_load_dword v{X+k}, v{vt[0]}, s[{sX}:{sX+3}], 0 offen offset:{256*k}")
        for R in range(10):
            d = vW + 4 * R
            a.vmem(f"W{R}", f"buffer_load_dwordx4 v[{d}:{d+3}], v{vW1}, s[{sW1}:{sW1+3}], s{sW1o} offen {self.nt}")
            if R < 9: I(f"s_add_u32 s{sW1o}, s{sW1o}, s{sW1s}")
        I("s_barrier")
        self.stamp(a, 0)
        I(f"v_add_u32 v{vt[1]}, {L_XR}, v{vt[0]}")
        a.wait("x4")
        self.stamp(a, 1)
        for k in range(5): I(f"ds_write_b32 v{vt[1]}, v{X+k} offset:{256*k}")
        F = vA
        for k in range(5):
            I(f"v_lshlrev_b32 v{F+2*k}, 16, v{X+k}"); I(f"v_and_b32 v{F+2*k+1}, 0xffff0000, v{X+k}")
        I(f"s_mul_i32 s{st[0]}, s{sC}, 160"); I(f"s_add_u32 s{st[0]}, s{st[0]}, {L_XR}")
        I(f"v_lshl_add_u32 v{vt[2]}, v{vOct}, 1, s{st[0]}")
        N = vX + 5
        for R in range(10): I(f"ds_read_u16 v{N+R}, v{vt[2]} offset:{16*R}")
        s, t = vt[3], vt[4]
        I(f"v_add_f32 v{s}, v{F}, v{F+1}"); I(f"v_add_f32 v{t}, v{F+2}, v{F+3}")
        for k in (4, 6, 8):
            I(f"v_add_f32 v{s}, v{s}, v{F+k}"); I(f"v_add_f32 v{t}, v{t}, v{F+k+1}")
        I(f"v_add_f32 v{s}, v{s}, v{t}")
        self.wave_reduce(a, "v_add_f32", s, t)
        mean = vt[0]
        I(f"v_mul_f32 v{mean}, {f32(1/640)}, v{s}")
        for k in range(10): I(f"v_sub_f32 v{F+k}, v{F+k}, v{mean}")
        I(f"v_mul_f32 v{s}, v{F}, v{F}"); I(f"v_mul_f32 v{t}, v{F+1}, v{F+1}")
        for k in range(2, 10, 2):
            I(f"v_fmac_f32 v{s}, v{F+k}, v{F+k}"); I(f"v_fmac_f32 v{t}, v{F+k+1}, v{F+k+1}")
        I(f"v_add_f32 v{s}, v{s}, v{t}")
        self.wave_reduce(a, "v_add_f32", s, t)
        I(f"v_mul_f32 v{s}, {f32(1/640)}, v{s}")
        self.rb(a, s, s)
        I(f"v_add_f32 v{s}, {f32(1e-5)}, v{s}")
        self.rb(a, s, s)
        I(f"v_sqrt_f32 v{s}, v{s}")
        self.rb(a, s, s)
        rden = vt[1]; meanb = vt[2]
        I(f"v_rcp_f32 v{rden}, v{s}")
        self.rb(a, meanb, mean)
        I("s_waitcnt lgkmcnt(0)")
        self.tags(a)
        PP = vA
        for R in range(10): I(f"v_lshlrev_b32 v{N+R}, 16, v{N+R}")
        for R in range(10): I(f"v_sub_f32 v{N+R}, v{N+R}, v{meanb}")
        for R in range(10): I(f"v_cvt_pk_bf16_f32 v{N+R}, v{N+R}, v{N+R}")
        for R in range(10): I(f"v_and_b32 v{N+R}, 0xffff0000, v{N+R}")
        for R in range(10): I(f"v_mul_f32 v{PP+R}, v{N+R}, v{rden}")
        for R in range(10): I(f"v_fma_f32 v{N+R}, -v{PP+R}, v{s}, v{N+R}")
        for R in range(10): I(f"v_fma_f32 v{PP+R}, v{N+R}, v{rden}, v{PP+R}")
        for R in range(10): I(f"v_cvt_pk_bf16_f32 v{PP+R}, v{PP+R}, v{PP+R}")
        self.stamp(a, 2)
        D = vD
        kq = 0
        for R in range(10):
            A = vX + 4 * (R & 1)
            self.aop(a, A, PP + R)
            a.wait(f"W{R}")
            self.mfma(a, D, A, vW + 4 * R, R == 0)
            if R >= 10 - w and kq < 12:
                self.kv_load(a, "K", kq); kq += 1
        P = vX + 8
        I(f"v_mov_b32 v{P+1}, s{sT}"); I(f"v_mov_b32 v{P+3}, s{sT}")
        self.fold(a, D, P, P + 2)
        a.vmem("pubA", f"buffer_store_dwordx4 v[{P}:{P+3}], v{vApub}, s[{sWS}:{sWS+3}], s{sApub} offen sc1")
        self.stamp(a, 3)
        seq = [("K", i) for i in range(kq, 12)]
        stream = []
        for it in seq: stream.append(it)
        stream = stream[:2] + [("Wd", 0), ("Wd", 1)] + stream[2:] + [("V", i) for i in range(12)] + [("wo", i) for i in range(6)]
        def issue(it):
            a.window(w)
            kind, i = it
            if kind in "KV": self.kv_load(a, kind, i)
            elif kind == "Wd":
                d = vWd + 4 * i
                a.vmem(f"Wd{i}", f"buffer_load_dwordx4 v[{d}:{d+3}], v{vWo}, s[{sWd}:{sWd+3}], s{sWdO} offen {self.nt}")
                if i == 0: I(f"s_add_u32 s{sWdO}, s{sWdO}, 10240")
            else:
                d = vWoD + 4 * i
                a.vmem(f"wo{i}", f"buffer_load_dwordx4 v[{d}:{d+3}], v{vWo}, s[{sWo}:{sWo+3}], s{sWoO} offen {self.nt}")
                if i < 5: I(f"s_add_u32 s{sWoO}, s{sWoO}, 10240")
        pos = [0]
        def run_until(name):
            while True:
                it = stream[pos[0]]; issue(it); pos[0] += 1
                if f"{it[0]}{it[1]}" == name: break
        PA = vW
        def issueA():
            for k in range(4):
                I(f"s_add_u32 s{st[0]}, s{sApoll}, {5120*k}")
                a.vmem(f"pa{k}", f"buffer_load_dwordx4 v[{PA+4*k}:{PA+4*k+3}], v{vApoll}, s[{sWS}:{sWS+3}], s{st[0]} offen sc1")
        def checkA():
            t0, t1 = vt[0], vt[1]
            for k in range(4):
                I(f"v_bitop3_b32 v{t0 if k == 0 else t1}, v{PA+4*k+1}, v{PA+4*k+3}, s{sT} bitop3:0x7e")
                if k: I(f"v_or_b32 v{t0}, v{t0}, v{t1}")
            I(f"v_cmp_ne_u32 vcc, 0, v{t0}")
        run_until(self.P["pollA_after"])
        issueA()
        run_until(self.P["checkA_after"])
        self.poll_retry(a, issueA, checkA, ["pa0", "pa1", "pa2", "pa3"])
        self.stamp(a, 4)
        s0, s1 = vt[0], vt[1]
        I(f"v_add_f32 v{s0}, v{PA}, v{PA+4}"); I(f"v_add_f32 v{s1}, v{PA+2}, v{PA+6}")
        I(f"v_add_f32 v{vt[2]}, v{PA+8}, v{PA+12}"); I(f"v_add_f32 v{vt[3]}, v{PA+10}, v{PA+14}")
        I(f"v_add_f32 v{s0}, v{s0}, v{vt[2]}"); I(f"v_add_f32 v{s1}, v{s1}, v{vt[3]}")
        I(f"v_permlane32_swap_b32 v{s0}, v{s1}")
        I(f"v_add_f32 v{s0}, v{s0}, v{s1}")
        I(f"v_cvt_pk_bf16_f32 v{s0}, v{s0}, v{s0}")
        I(f"ds_write_b16 v{vQwr}, v{s0}")
        self.lds_inc(a, L_CNTQ)
        run_until(self.P["h_after"])
        self.lds_wait(a, L_CNTQ, 5)
        I(f"s_lshl_b32 s{st[0]}, s{sRq}, 5"); I(f"s_add_u32 s{st[0]}, s{st[0]}, {L_QL+384}")
        I(f"v_lshl_add_u32 v{vt[0]}, v{vOct}, 1, s{st[0]}")
        G = vX
        for R in range(2):
            I(f"ds_read_u16 v{G+R}, v{vt[0]} offset:{16*R}")
            I(f"ds_read_u16 v{G+2+R}, v{vt[0]} offset:{128+16*R}")
        I("s_waitcnt lgkmcnt(0)")
        for k in range(4): I(f"v_lshlrev_b32 v{G+k}, 16, v{G+k}")
        for R in range(2):
            I(f"v_cmp_lt_f32 vcc, 0, v{G+R}"); I(f"v_cndmask_b32 v{G+4+R}, 0, 1.0, vcc")
        for R in range(2): I(f"v_mul_f32 v{G+R}, v{G+R}, v{G+4+R}")
        for R in range(2): I(f"v_mul_f32 v{G+R}, v{G+R}, v{G+2+R}")
        for R in range(2): I(f"v_cvt_pk_bf16_f32 v{G+R}, v{G+R}, v{G+R}")
        for R in range(2): self.aop(a, vX + 8 + 4 * R, G + R)
        for R in range(2):
            a.wait(f"Wd{R}")
            self.mfma(a, D, vX + 8 + 4 * R, vWd + 4 * R, R == 0)
        self.fold(a, D, vX, vX + 1)
        for i in range(2): I(f"v_bfi_b32 v{vX+i}, v{vMask}, v{vTag}, v{vX+i}")
        a.vmem("pubCb", f"buffer_store_dwordx2 v[{vX}:{vX+1}], v{vCpub}, s[{sWS}:{sWS+3}], s{sCb} offen sc1")
        self.stamp(a, 5)
        run_until(self.P["qk_after"])
        a.wait("K11")
        self.qk(a)
        self.stamp(a, 6)
        run_until(self.P["sm_after"])
        self.softmax(a)
        self.stamp(a, 7)
        nxt = 0
        def landed(n): return ("V", n) in stream[:pos[0]] and f"V{n}" not in a.vm
        while pos[0] < len(stream):
            issue(stream[pos[0]]); pos[0] += 1
            while nxt < 12 and landed(nxt):
                self.pv(a, nxt); nxt += 1
        while nxt < 12:
            self.pv(a, nxt); nxt += 1
        self.stamp(a, 8)
        self.pv_finish(a, 9)
        self.stamp(a, 10)
        BP = vW
        def issueB():
            a.vmem("pb0", f"buffer_load_dwordx4 v[{BP}:{BP+3}], v{vBpoll}, s[{sWS}:{sWS+3}], s{sBpoll} offen sc1")
            a.vmem("pb1", f"buffer_load_dwordx4 v[{BP+4}:{BP+7}], v{vBpoll}, s[{sWS}:{sWS+3}], s{sBpoll} offen offset:16 sc1")
        def checkB():
            self.bad_tags10(a, [(BP, BP + 1), (BP + 4, BP + 5)], [(BP + 2, BP + 3), (BP + 6, BP + 7)], vt[0], vt[1])
        issueB()
        self.poll_retry(a, issueB, checkB, ["pb0", "pb1"])
        self.stamp(a, 11)
        m, l = BP + 6, BP + 7
        I(f"v_bfi_b32 v{m}, v{vMask}, 0, v{m}")
        for k in (0, 1, 2, 3, 4, 5, 7): I(f"v_bfi_b32 v{BP+k}, v{vMask}, v{vMid}, v{BP+k}")
        M = vt[0]
        I(f"v_mov_b32 v{M}, v{m}")
        self.oct_reduce(a, "v_max_f32", [M])
        I(f"v_sub_f32 v{m}, v{m}, v{M}"); I(f"v_mul_f32 v{m}, {f32(1.4426950408889634)}, v{m}"); I(f"v_exp_f32 v{m}, v{m}")
        I(f"v_mul_f32 v{l}, v{l}, v{m}")
        for k in range(6): I(f"v_mul_f32 v{BP+k}, v{BP+k}, v{m}")
        self.oct_reduce(a, "v_add_f32", [l] + [BP + k for k in range(6)])
        I(f"v_rcp_f32 v{l}, v{l}")
        for k in range(6): I(f"v_mul_f32 v{BP+k}, v{BP+k}, v{l}")
        for k in range(6): I(f"v_cvt_pk_bf16_f32 v{BP+k}, v{BP+k}, v{BP+k}")
        for k in range(6):
            A = vA + 4 * (k % 4)
            self.aop(a, A, BP + k)
            a.wait(f"wo{k}")
            self.mfma(a, D, A, vWoD + 4 * k, k == 0)
        self.fold(a, D, vX, vX + 1)
        for i in range(2): I(f"v_bfi_b32 v{vX+i}, v{vMask}, v{vTag}, v{vX+i}")
        a.vmem("pubCs", f"buffer_store_dwordx2 v[{vX}:{vX+1}], v{vCpub}, s[{sWS}:{sWS+3}], s{sCs} offen sc1")
        self.stamp(a, 12)
        self.write_stamps(a)
        I("s_endpgm")

    def role_b(self, a, red):
        I = a.I; w = self.wB
        stream = [("K", i) for i in range(12)] + [("V", i) for i in range(12)]
        pos = [0]
        def run_until(name):
            while True:
                k, i = stream[pos[0]]; a.window(w); self.kv_load(a, k, i); pos[0] += 1
                if f"{k}{i}" == name: break
        run_until(f"K{w-1}")
        I("s_barrier")
        self.stamp(a, 0)
        I("s_waitcnt lgkmcnt(0)")
        self.tags(a)
        if red:
            col = vt[2]
            I(f"v_bfe_u32 v{vt[0]}, v{vL}, 4, 1"); I(f"v_lshrrev_b32 v{vt[1]}, 5, v{vL}")
            I(f"v_lshl_add_u32 v{col}, v{vt[0]}, 1, v{vt[1]}")
            I(f"s_lshl_b32 s{st[0]}, s{sQ}, 2"); I(f"v_add_u32 v{col}, s{st[0]}, v{col}"); I(f"v_lshlrev_b32 v{vApub}, 1, v{col}")
            I(f"v_and_b32 v{vt[0]}, 15, v{vL}"); I(f"v_cmp_eq_u32 vcc, 0, v{vt[0]}"); I(f"v_mov_b32 v{vt[1]}, {OOB}")
            I(f"v_cndmask_b32 v{vApoll}, v{vt[1]}, v{vApub}, vcc")
            I(f"v_mul_u32_u24 v{vCpub}, 2560, v{vL}")
            I(f"s_cmp_ge_u32 s{sQ}, 80"); I(f"s_cselect_b32 s{st[0]}, 1, 0")
            I(f"s_mul_i32 s{st[1]}, s{st[0]}, 80"); I(f"s_sub_u32 s{st[1]}, s{sQ}, s{st[1]}"); I(f"s_lshl_b32 s{st[1]}, s{st[1]}, 4")
            I(f"s_mul_i32 s{st[0]}, s{st[0]}, 1280"); I(f"s_add_u32 s{st[0]}, s{st[0]}, s{st[1]}")
            I(f"s_add_u32 s{sRs}, s{st[0]}, {CS_OFF}"); I(f"s_add_u32 s{sRb}, s{st[0]}, {CB_OFF}")
        run_until(self.P["b_qk_after"])
        self.lds_wait(a, L_CNTQ, 5)
        a.wait("K11")
        self.qk(a)
        self.stamp(a, 6)
        CP, XP = vW, vW + 16
        def mk_issue(sbase, pre):
            def f():
                a.vmem(pre + "0", f"buffer_load_dwordx4 v[{CP}:{CP+3}], v{vCpub}, s[{sWS}:{sWS+3}], s{sbase} offen sc1")
                I(f"s_add_u32 s{st[0]}, s{sbase}, {64*2560}")
                a.vmem(pre + "1", f"buffer_load_dwordx4 v[{CP+4}:{CP+7}], v{vCpub}, s[{sWS}:{sWS+3}], s{st[0]} offen sc1")
            return f
        def checkC():
            self.bad_tags10(a, [(CP, CP + 1), (CP + 4, CP + 5)], [(CP + 2, CP + 3), (CP + 6, CP + 7)], vt[0], vt[1])
        def reduceC(dst):
            for k in range(8): I(f"v_bfi_b32 v{CP+k}, v{vMask}, v{vMid}, v{CP+k}")
            for k in range(4): I(f"v_add_f32 v{CP+k}, v{CP+k}, v{CP+4+k}")
            I(f"v_permlane32_swap_b32 v{CP}, v{CP+1}"); I(f"v_permlane32_swap_b32 v{CP+2}, v{CP+3}")
            I(f"v_add_f32 v{CP}, v{CP}, v{CP+1}"); I(f"v_add_f32 v{CP+2}, v{CP+2}, v{CP+3}")
            I(f"v_permlane16_swap_b32 v{CP}, v{CP+2}")
            I(f"v_add_f32 v{dst}, v{CP}, v{CP+2}")
            for k in (8, 4, 2, 1): self.dpp(a, "v_add_f32", dst, dst, dst, f"row_ror:{k}")
        run_until(self.P["b_sm_after"])
        if red:
            mk_issue(sRb, "cb")()
            a.vmem("xq", f"buffer_load_ushort v{XP}, v{vApub}, s[{sX}:{sX+3}], 0 offen")
        self.softmax(a)
        self.stamp(a, 7)
        nxt = 0
        def landed(n): return ("V", n) in stream[:pos[0]] and f"V{n}" not in a.vm
        while pos[0] < len(stream):
            k, i = stream[pos[0]]; a.window(w); self.kv_load(a, k, i); pos[0] += 1
            while nxt < 12 and landed(nxt):
                self.pv(a, nxt); nxt += 1
        while nxt < 12:
            self.pv(a, nxt); nxt += 1
        self.stamp(a, 8)
        self.pv_finish(a, 9)
        self.stamp(a, 10)
        if red:
            a.wait("xq")
            self.poll_retry(a, mk_issue(sRb, "cb"), checkC, ["cb0", "cb1"]) if "cb1" in a.vm else self._late_check(a, mk_issue(sRb, "cb"), checkC)
            g = vW + 17
            reduceC(g)
            self.rb(a, g, g)
            e = vt[0]
            I(f"v_mul_f32 v{e}, {f32(-1.4426950408889634)}, v{g}"); I(f"v_exp_f32 v{e}, v{e}")
            I(f"v_add_f32 v{e}, 1.0, v{e}"); I(f"v_rcp_f32 v{vt[1]}, v{e}")
            I(f"v_mul_f32 v{vt[2]}, v{g}, v{vt[1]}")
            I(f"v_fma_f32 v{vt[3]}, -v{vt[2]}, v{e}, v{g}"); I(f"v_fma_f32 v{vt[3]}, v{vt[3]}, v{vt[1]}, v{vt[2]}")
            I(f"v_cmp_class_f32 vcc, v{vt[3]}, v{vMask}" if False else f"v_cmp_o_f32 vcc, v{vt[3]}, v{vt[3]}")
            I(f"v_cndmask_b32 v{g}, v{vt[2]}, v{vt[3]}, vcc")
            self.rb(a, g, g)
            I(f"v_lshlrev_b32 v{XP}, 16, v{XP}")
            self.stamp(a, 11)
            mk_issue(sRs, "cs")()
            self.poll_retry(a, mk_issue(sRs, "cs"), checkC, ["cs0", "cs1"])
            self.stamp(a, 12)
            s = vW + 18
            reduceC(s)
            self.rb(a, s, s)
            I(f"v_mul_f32 v{s}, v{s}, v{g}")
            self.rb(a, s, s)
            I(f"v_add_f32 v{s}, v{XP}, v{s}")
            I(f"v_cvt_pk_bf16_f32 v{s}, v{s}, v{s}")
            a.vmem("out", f"buffer_store_short v{s}, v{vApoll}, s[{sOut}:{sOut+3}], 0 offen")
            skip = self.lbl("noep")
            I(f"s_cmp_lg_u32 s{sQ}, 0"); I(f"s_cbranch_scc1 {skip}")
            I(f"v_mov_b32 v{vt[0]}, s{sT}"); I(f"v_mov_b32 v{vt[1]}, {OOB}"); I(f"v_cmp_eq_u32 vcc, 0, v{vL}"); I(f"v_cndmask_b32 v{vt[1]}, v{vt[1]}, 0, vcc")
            I(f"buffer_store_dword v{vt[0]}, v{vt[1]}, s[{sWS}:{sWS+3}], 0 offen sc1")
            a.label(skip)
            self.stamp(a, 13)
        self.write_stamps(a)
        I("s_endpgm")
    def _late_check(self, a, issue, check):
        ok = self.lbl("ok"); lp = self.lbl("rt")
        check()
        a.I(f"s_cbranch_vccz {ok}")
        a.I(f"s_mov_b32 s{sSpin}, 0")
        a.label(lp)
        saved = list(a.vm)
        issue()
        a.I("s_waitcnt vmcnt(0)")
        a.vm = saved
        check()
        a.I(f"s_add_u32 s{sSpin}, s{sSpin}, 1")
        a.I(f"s_cmp_gt_u32 s{sSpin}, {SPIN}")
        a.I(f"s_cbranch_scc1 {ok}")
        a.I(f"s_cbranch_vccnz {lp}")
        a.label(ok)

    def write_stamps(self, a):
        if not self.stamps: return
        I = a.I
        I("s_memrealtime s[76:77]")
        I("s_waitcnt vmcnt(0) lgkmcnt(0)")
        I(f"s_lshl_b32 s{sSpin}, s2, 3"); I(f"s_add_u32 s{sSpin}, s{sSpin}, s3"); I(f"s_lshl_b32 s{sSpin}, s{sSpin}, 7"); I(f"s_add_u32 s{sSpin}, s{sSpin}, {STAMP_OFF}")
        I(f"v_mov_b32 v{vt[0]}, 0"); I("s_mov_b64 exec, 1")
        allst = [100] + STAMPS + [76]
        for k, s in enumerate(allst):
            I(f"v_mov_b32 v{vt[1]}, s{s}")
            I(f"buffer_store_dword v{vt[1]}, v{vt[0]}, s[{sWS}:{sWS+3}], s{sSpin} offen offset:{4*k}")
        I("s_waitcnt vmcnt(0)")

    def build(self, P=None):
        self.P = dict(pollA_after="K9", checkA_after="V0", h_after="V2", qk_after="V5", sm_after="V8",
                      b_qk_after="V7", b_sm_after="V9")
        if P: self.P.update(P)
        a = Asm()
        self.prologue(a)
        if self.stamps:
            pass
        a.I("s_cmp_lt_u32 s3, 5"); a.I("s_cbranch_scc0 L_roleB")
        ra = Asm(); self.role_a(ra)
        rb = Asm()
        rb.label("L_roleB")
        rb.I("s_cmp_eq_u32 s3, 6"); rb.I("s_cbranch_scc0 L_roleB2")
        rb.I(f"s_and_b32 s{st[0]}, s2, 7"); rb.I(f"s_lshr_b32 s{st[1]}, s2, 6"); rb.I(f"s_lshl_b32 s{st[1]}, s{st[1]}, 3"); rb.I(f"s_add_u32 s{st[0]}, s{st[0]}, s{st[1]}")
        rb.I(f"s_cmp_lt_u32 s{st[0]}, 20"); rb.I("s_cbranch_scc0 L_roleB2")
        rb.I(f"s_lshl_b32 s{st[0]}, s{st[0]}, 3"); rb.I(f"s_bfe_u32 s{st[1]}, s2, 0x30003"); rb.I(f"s_add_u32 s{sQ}, s{st[0]}, s{st[1]}")
        self.role_b(rb, True)
        rc = Asm()
        rc.label("L_roleB2")
        self.role_b(rc, False)
        body = a.lines + ra.lines + rb.lines + rc.lines + ["L_end:", "s_endpgm"]
        body, nins = fix_hazards(body)
        head = [f"; @launch grid=(256,1,1) block=(512,1,1) lds={LDS_BYTES}",
                '.amdgcn_target "amdgcn-amd-amdhsa--gfx950"', ".text", f".globl {NAME}_kernel", ".p2align 8",
                f".type {NAME}_kernel,@function", f"{NAME}_kernel:"]
        tail = ['.section .rodata,"a"', ".p2align 6", f".amdhsa_kernel {NAME}_kernel",
                "  .amdhsa_next_free_vgpr 256", "  .amdhsa_next_free_sgpr 102", "  .amdhsa_accum_offset 256",
                "  .amdhsa_group_segment_fixed_size 0", "  .amdhsa_kernarg_size 96", "  .amdhsa_user_sgpr_count 2",
                "  .amdhsa_user_sgpr_kernarg_segment_ptr 1", "  .amdhsa_system_sgpr_workgroup_id_x 1",
                "  .amdhsa_float_denorm_mode_32 3", ".end_amdhsa_kernel"]
        return "\n".join(head + ["    " + l if not l.endswith(":") else l for l in body] + tail) + "\n"

if __name__ == "__main__":
    out = sys.argv[1] if len(sys.argv) > 1 else "k1.s"
    g = Gen(stamps=("stamps" in sys.argv))
    open(out, "w").write(g.build())
    print("wrote", out)
```
